```python
import torch

def _softmax(x, axis=-1):
    return torch.softmax(x, dim=axis)
def _gelu(x):
    return torch.nn.functional.gelu(x, approximate="tanh")
def _silu(x):
    return torch.nn.functional.silu(x)
def _sigmoid(x):
    return torch.sigmoid(x)
def _layernorm(x, axis=-1, eps=1e-5):
    m = x.mean(dim=axis, keepdim=True)
    v = x.var(dim=axis, keepdim=True, unbiased=False)
    return (x - m) / torch.sqrt(v + eps)
def _scatter_add(tgt, idx, src, axis=0):
    return tgt.clone().index_add_(axis, idx, src)
def _segment_sum(src, seg, n):
    out = torch.zeros((n,) + src.shape[1:], dtype=src.dtype)
    return out.index_add_(0, seg, src)
def _pad(x, pw):
    flat = tuple(v for pair in reversed(pw) for v in pair)
    return torch.nn.functional.pad(x, flat)

kernel_name = 'sequential_preLN__mha_block__moe_arch_mod__prompt'

def setup_inputs():

    _w = (lambda a: (lambda t: t.to(torch.bfloat16) if t.is_floating_point() else t)(torch.as_tensor(a)))
    def _A_setup():
        B, S, D, H = 1, 2048, 640, 32
        return {
            "x": _w((lambda *s: torch.randn(*s, dtype=torch.bfloat16) * 0.05)(B, S, D)),
            "wqkv": _w((lambda *s: torch.randn(*s, dtype=torch.bfloat16) * 0.05)(D, 3 * D)),
            "wo": _w((lambda *s: torch.randn(*s, dtype=torch.bfloat16) * 0.05)(D, D)),
        }
    _A_in = _A_setup()

    def _B_setup():
        B, S, D, F, C = 1, 2048, 640, 1728, 1
        return {
            "x": _w((lambda *s: torch.randn(*s, dtype=torch.bfloat16) * 0.05)(B, S, D)),
            "w_r": _w((lambda *s: torch.randn(*s, dtype=torch.bfloat16) * 0.05)(D)),
            "w_gate": _w((lambda *s: torch.randn(*s, dtype=torch.bfloat16) * 0.05)(D, F)),
            "w_up": _w((lambda *s: torch.randn(*s, dtype=torch.bfloat16) * 0.05)(D, F)),
            "w_down": _w((lambda *s: torch.randn(*s, dtype=torch.bfloat16) * 0.05)(F, D)),
        }
    _B_in = _B_setup()

    return {
        "A_x": _A_in["x"],
        "A_wqkv": _A_in["wqkv"],
        "A_wo": _A_in["wo"],
        "B_x": _B_in["x"],
        "B_w_r": _B_in["w_r"],
        "B_w_gate": _B_in["w_gate"],
        "B_w_up": _B_in["w_up"],
        "B_w_down": _B_in["w_down"],
    }

def reference(A_x, A_wqkv, A_wo, B_x, B_w_r, B_w_gate, B_w_up, B_w_down):
    def _A_ref(x, wqkv, wo):
        B, S, D = x.shape
        H = 32
        Dh = D // H
        qkv = (lambda x, *d: x.permute(*d))((x @ wqkv).reshape(B, S, 3, H, Dh), 2, 0, 3, 1, 4)
        q, k, v = qkv[0], qkv[1], qkv[2]
        scores = torch.einsum("bhqd,bhkd->bhqk", q, k) * (Dh ** -0.5)
        p = _softmax(scores, axis=-1)
        o = torch.einsum("bhqk,bhkd->bhqd", p, v)
        return (lambda x, *d: x.permute(*d))(o, 0, 2, 1, 3).reshape(B, S, D) @ wo

    def _B_ref(x, w_r, w_gate, w_up, w_down):
        B, S, D = x.shape
        C = 1
        r = x @ w_r
        idx = torch.argsort(-r, axis=-1)[:, :C]
        idx_e = (lambda x, n, axis: torch.repeat_interleave(x, n, dim=axis))(idx.reshape(B, C, 1), D, axis=2)
        x_sel = (lambda x, i, axis: torch.take_along_dim(x, i, dim=axis))(x, idx_e, axis=1)
        g = _silu(x_sel @ w_gate)
        u = x_sel @ w_up
        y = (g * u) @ w_down
        r_sel = _sigmoid((lambda x, i, axis: torch.take_along_dim(x, i, dim=axis))(r, idx, axis=1))
        y = y * r_sel.reshape(B, C, 1)
        b_off = (torch.arange(B) * S).reshape(B, 1)
        flat_idx = (idx + b_off).reshape(B * C)
        zero = (x * 0.0).reshape(B * S, D)
        upd = _scatter_add(zero, flat_idx, y.reshape(B * C, D), axis=0)
        return x + upd.reshape(B, S, D)

    x = A_x
    h = x + _A_ref(_layernorm(x, axis=-1), A_wqkv, A_wo)
    h2 = h + _B_ref(_layernorm(h, axis=-1), B_w_r, B_w_gate, B_w_up, B_w_down)
    return h2
```

```python
import re

class Asm:
    def __init__(self):
        self.lines = []
    def __call__(self, *ins):
        for s in ins:
            for l in s.split("\n"):
                l = l.rstrip()
                if l.strip():
                    self.lines.append(l if l.endswith(":") or l.startswith(".") else "    " + l.strip())
    def label(self, name):
        self.lines.append(name + ":")
    def comment(self, c):
        self.lines.append("    ; " + c)
    def text(self):
        return "\n".join(self.lines) + "\n"

def vr(a, n=1, p="v"):
    return f"{p}{a}" if n == 1 else f"{p}[{a}:{a+n-1}]"
def sr(a, n=1):
    return vr(a, n, "s")

_reg_re = re.compile(r"\b([vsa])(\d+)\b|\b([vsa])\[(\d+):(\d+)\]|\b(vcc|exec|m0|scc)\b")
def regs_of(op):
    out = set()
    for m in _reg_re.finditer(op):
        if m.group(1): out.add((m.group(1), int(m.group(2))))
        elif m.group(3):
            for i in range(int(m.group(4)), int(m.group(5)) + 1): out.add((m.group(3), i))
        else: out.add((m.group(6), 0))
    return out

TRANS = ("v_exp_", "v_log_", "v_rcp_", "v_rsq_", "v_sqrt_", "v_sin_", "v_cos_")
def split_ops(rest):
    ops, depth, cur = [], 0, ""
    for ch in rest:
        if ch == "[": depth += 1
        if ch == "]": depth -= 1
        if ch == "," and depth == 0:
            ops.append(cur.strip()); cur = ""
        else: cur += ch
    if cur.strip(): ops.append(cur.strip())
    return ops

class Ins:
    def __init__(self, line):
        self.line = line.strip()
        code = self.line.split(";")[0].strip()
        parts = code.split(None, 1)
        self.op = parts[0]
        ops = split_ops(parts[1]) if len(parts) > 1 else []
        self.ops = ops
        o = self.op
        self.mfma = o.startswith("v_mfma") or o.startswith("v_smfmac")
        self.valu = o.startswith("v_") and not self.mfma
        self.trans = o.startswith(TRANS)
        self.dot = o.startswith("v_dot")
        self.vmem = o.startswith(("buffer_", "global_", "flat_"))
        self.ds = o.startswith("ds_")
        self.salu = o.startswith("s_")
        self.w, self.r = set(), set()
        self.states = 1
        if o == "s_nop": self.states = int(ops[0], 0) + 1
        R = [regs_of(x) for x in ops]
        if self.mfma:
            self.w = R[0]; self.A = R[1]; self.B = R[2]; self.C = R[3] if len(R) > 3 else set()
            self.r = self.A | self.B | self.C
            n = len(self.w)
            if "32x32x16" in o or "32x32x8" in o: self.passes = 8
            elif "16x16x32" in o or "16x16x16" in o: self.passes = 4
            elif "32x32x4" in o: self.passes = 16
            else: raise ValueError("passes? " + o)
        elif self.valu:
            if o.startswith("v_cmp"):
                self.w = R[0]; self.r = set().union(*R[1:])
                if o.startswith("v_cmpx"): self.w |= {("exec", 0)}
            elif o.startswith("v_permlane") and "swap" in o:
                self.w = R[0] | R[1]; self.r = R[0] | R[1]
            elif o.startswith(("v_add_co", "v_sub_co", "v_addc_co", "v_subb_co")):
                self.w = R[0] | R[1]; self.r = set().union(*R[2:])
            elif o == "v_nop":
                pass
            else:
                self.w = R[0]; self.r = set().union(*R[1:]) if len(R) > 1 else set()
                if o.startswith(("v_fmac", "v_dot2c", "v_mac", "v_writelane")) or "UNUSED_PRESERVE" in code or "dpp" in o or "row_" in code or "quad_perm" in code:
                    self.r |= R[0]
            self.dpp = ("row_" in code or "quad_perm" in code or "wave_" in code)
        elif self.vmem:
            allr = set().union(*R) if R else set()
            if "store" in o or ("atomic" in o):
                self.r = allr
                if "atomic" in o and " sc0" in code: self.w = R[0]
            elif " lds" in code:
                self.r = allr | {("m0", 0)}
            else:
                self.w = R[0]; self.r = set().union(*R[1:])
        elif self.ds:
            if o.startswith(("ds_read", "ds_bpermute", "ds_permute", "ds_swizzle")):
                self.w = R[0]; self.r = set().union(*R[1:])
            else:
                self.r = set().union(*R)
        elif self.salu:
            if o.startswith(("s_cmp", "s_cbranch", "s_branch", "s_waitcnt", "s_barrier", "s_nop", "s_endpgm", "s_setprio", "s_sleep", "s_bitcmp")):
                self.r = set().union(*R) if R else set()
            else:
                self.w = R[0] if R else set(); self.r = set().union(*R[1:]) if len(R) > 1 else set()
                if "saveexec" in o: self.w |= {("exec", 0)}

def check_seq(lines, name=""):
    ins = [Ins(l) for l in lines if l.strip() and not l.strip().startswith((";", ".")) and not l.strip().endswith(":")]
    probs = []
    for j, c in enumerate(ins):
        dist = 0
        for i in range(j - 1, max(-1, j - 40), -1):
            p = ins[i]
            need = 0; why = ""
            isv = lambda s: {x for x in s if x[0] in "va"}
            iss = lambda s: {x for x in s if x[0] == "s" or x[0] == "vcc"}
            if p.valu and c.mfma and isv(p.w) & c.r: need, why = 2, "VALU->MFMA operand"
            if p.mfma:
                ps = p.passes
                t = {2: 0, 4: 1, 8: 2, 16: 3}[ps]
                if c.mfma:
                    if p.w & (c.A | c.B): need, why = max(need, [5, 8, 12, 20][t]), "MFMA D->MFMA A/B"
                    if p.w & c.C:
                        if p.w == c.C and c.passes == ps: n2 = [2, 0, 0, 0][t]
                        else: n2 = [4, 6, 10, 18][t]
                        if n2 > need: need, why = n2, "MFMA D->MFMA C"
                    if (p.w & c.w) and not (p.w & c.C):
                        n2 = 0 if c.passes >= ps else [4, 6, 10, 18][t]
                        if n2 > need: need, why = n2, "MFMA D->MFMA D WAW"
                elif (c.valu or c.vmem or c.ds) and (p.w & (c.r | c.w)):
                    need, why = [5, 8, 12, 20][t], "MFMA D->VALU/mem"
                if c.valu and (p.C & c.w):
                    n2 = [1, 3, 7, 15][t]
                    if n2 > need: need, why = n2, "MFMA C WAR"
            if p.valu:
                if p.trans and c.valu and not c.trans and (p.w & c.r): need, why = max(need, 1), "trans->VALU"
                if p.trans and c.mfma and (p.w & c.r): need, why = max(need, 2), "trans->MFMA"
                if p.dot and (c.valu or c.mfma) and isv(p.w) & (c.r | c.w):
                    same = (c.op == p.op)
                    if same:
                        srcs = set().union(*[regs_of(x) for x in c.ops[1:3]])
                        n2 = 3 if (p.w & srcs) else 0
                    else: n2 = 3
                    if n2 > need: need, why = n2, "DLop result"
                if iss(p.w):
                    if c.vmem and iss(p.w) & c.r: need, why = max(need, 5), "VALU SGPR->VMEM"
                    if c.valu and iss(p.w) & c.r:
                        n2 = 4 if c.op.startswith(("v_readlane", "v_writelane")) else 2
                        if c.op.startswith("v_div_fmas"): n2 = 4
                        if n2 > need: need, why = n2, "VALU SGPR->VALU"
                if c.op.startswith(("v_readlane", "v_readfirstlane")) and isv(p.w) & c.r: need, why = max(need, 1), "VALU->readlane"
                if c.op.startswith("v_permlane") and isv(p.w) & c.r: need, why = max(need, 2), "VALU->permlane"
                if c.valu and getattr(c, "dpp", False) and isv(p.w) & c.r: need, why = max(need, 2), "VALU->DPP"
                if ("exec", 0) in p.w:
                    if c.mfma: need, why = max(need, 4), "VALU exec->MFMA"
                    if c.valu and getattr(c, "dpp", False): need, why = max(need, 5), "VALU exec->DPP"
                    if c.op.startswith(("v_readlane", "v_readfirstlane", "v_writelane", "v_permlane")): need, why = max(need, 4), "VALU exec->lane op"
                if ("sdwa" in p.op or "op_sel" in p.line and not p.op.startswith("v_pk")) and c.valu and isv(p.w) & (c.r): need, why = max(need, 1), "SDWA/opsel result"
            if p.vmem and ("store" in p.op) and ("x3" in p.op or "x4" in p.op):
                data = regs_of(p.ops[0]) if p.op.startswith("buffer") else regs_of(p.ops[1])
                if data & c.w: need, why = max(need, 2 if c.valu else 1), "store data WAR"
            if p.salu and ("m0", 0) in p.w and c.vmem and ("m0", 0) in c.r: need, why = max(need, 1), "m0->LDS DMA"
            if need > dist:
                probs.append(f"{name}: need {need} have {dist} [{why}]\n     P: {p.line}\n     C: {c.line}")
            dist += p.states
            if dist >= 20: break
    return probs
```

```python
from asmlib import *
NAME = "sequential_preLN__mha_block__moe_arch_mod__prompt"
S, D, H, DH, F = 2048, 640, 32, 20, 1728
KA_X, KA_WQKV, KA_WO, KA_BX, KA_WR, KA_WG, KA_WU, KA_WD, KA_OUT, KA_DBG, KA_WS = [8*i for i in range(11)]
QPB = 2560
QHS = 32*QPB
KPB = 5248
KHS = 32*KPB
WS_Q  = 0
WS_KV = WS_Q + 32*QHS
WS_O  = WS_KV + 32*KHS + 8192
WS_H  = WS_O + S*D*2
WS_ST = WS_H + S*D*2
WS_WO = WS_ST + S*16
WS_PART = WS_WO + D*D*2
WS_MISC = WS_PART + 4*2*F*4
WS_END = WS_MISC + 4096
OOB = 0x80000000
ONES = 0x3F803F80
import math, struct
def f32(x): return struct.unpack("<I", struct.pack("<f", x))[0]
QSCALE = math.log2(math.e) / math.sqrt(DH)

def srd(a, d, b, nbytes):
    a(f"s_mov_b32 s{d}, s{b}", f"s_mov_b32 s{d+1}, s{b+1}", f"s_mov_b32 s{d+2}, {nbytes:#x}", f"s_mov_b32 s{d+3}, 0x00020000")

def kernel_head(a, label):
    a(f".globl {label}", ".p2align 8", f".type {label},@function")
    a.label(label)

def descriptor(label, nv, accum=None, ns=102):
    accum = accum or (nv + 3)//4*4
    return f""".p2align 6
.amdhsa_kernel {label}
  .amdhsa_next_free_vgpr {nv}
  .amdhsa_next_free_sgpr {ns}
  .amdhsa_accum_offset {accum}
  .amdhsa_group_segment_fixed_size 0
  .amdhsa_kernarg_size 88
  .amdhsa_user_sgpr_count 2
  .amdhsa_user_sgpr_kernarg_segment_ptr 1
  .amdhsa_system_sgpr_workgroup_id_x 1
.end_amdhsa_kernel
"""
if __name__ == "__main__":
    for n in "WS_Q WS_KV WS_O WS_H WS_ST WS_WO WS_PART WS_MISC WS_END".split(): print(n, hex(globals()[n]))
    assert all((q*205)>>10 == q//5 for q in range(160))
    assert all((c*3277)>>16 == c//20 for c in range(640))
    assert all((t*205)>>14 == t//80 for t in range(512)), [t for t in range(512) if (t*205)>>14 != t//80][:5]
    assert all((u*205)>>11 == u//10 for u in range(80))
    print("ok", QSCALE)

import os
PROF = os.environ.get("PROF", "")
def stamp(a, kern, idx):
    if kern in PROF.split(","): a(f"s_memtime s[{60+2*idx}:{61+2*idx}]")
def stamp_real(a, kern, idx):
    if kern in PROF.split(","): a(f"s_memrealtime s[{60+2*idx}:{61+2*idx}]")
def stamp_out(a, kern, n, wave_sgpr):
    if kern not in PROF.split(","): return
    a(f"s_load_dwordx2 s[84:85], s[0:1], {KA_WS}", "s_waitcnt lgkmcnt(0)",
      f"s_add_u32 s84, s84, {WS_END}", "s_addc_u32 s85, s85, 0", "s_mov_b32 s86, 0x40000", "s_mov_b32 s87, 0x00020000",
      "s_lshl_b32 s88, s2, 3", f"s_add_u32 s88, s88, s{wave_sgpr}", "s_lshl_b32 s88, s88, 6", "v_mov_b32 v1, s88")
    for i in range(n): a(f"v_mov_b32 v2, s{60+2*i}", f"buffer_store_dword v2, v1, s[84:87], 0 offen offset:{4*i}")
```

```python
import sys, importlib
from common import *
HEADER = open("cdna_kernels/" + NAME + ".s.ref").read().split("; Override launch")[0]

def build(kernels, out):
    a = Asm()
    probs = []
    def chk(lines, name): probs.extend(check_seq(lines, name))
    infos = []
    a('.amdgcn_target "amdgcn-amd-amdhsa--gfx950"', ".text")
    for k in kernels:
        infos.append(k(a, chk))
    txt = HEADER
    for (label, grid, block, lds, nv, *rest) in infos:
        txt += f"; @launch kernel={label} grid=({grid},1,1) block=({block},1,1) lds={lds}\n"
    txt += a.text()
    txt += '.section .rodata,"a"\n'
    seen = set()
    for (label, grid, block, lds, nv, *rest) in infos:
        if label in seen: continue
        seen.add(label)
        txt += descriptor(label, nv, *rest)
    open(out, "w").write(txt)
    for p in probs: print("HAZARD", p)
    print("wrote", out, len(txt), "bytes;", len(probs), "hazards")

if __name__ == "__main__":
    names = sys.argv[2:] or ["k1", "k2", "k3", "k4", "k5"]
    ks = []
    for n in names:
        mod, _, fn = n.partition(":")
        ks.append(getattr(importlib.import_module(mod), fn or mod))
    build(ks, sys.argv[1])
```

```python
from asmlib import *
NAME = "sequential_preLN__mha_block__moe_arch_mod__prompt"
S, D, H, DH, F = 2048, 640, 32, 20, 1728
KA_X, KA_WQKV, KA_WO, KA_BX, KA_WR, KA_WG, KA_WU, KA_WD, KA_OUT, KA_DBG, KA_WS = [8*i for i in range(11)]
QPB = 2560
QHS = 32*QPB
KPB = 5248
KHS = 32*KPB
WS_Q  = 0
WS_KV = WS_Q + 32*QHS
WS_O  = WS_KV + 32*KHS + 8192
WS_H  = WS_O + S*D*2
WS_ST = WS_H + S*D*2
WS_WO = WS_ST + S*16
WS_PART = WS_WO + D*D*2
WS_MISC = WS_PART + 4*2*F*4
WS_END = WS_MISC + 4096
OOB = 0x80000000
ONES = 0x3F803F80
import math, struct
def f32(x): return struct.unpack("<I", struct.pack("<f", x))[0]
QSCALE = math.log2(math.e) / math.sqrt(DH)

def srd(a, d, b, nbytes):
    a(f"s_mov_b32 s{d}, s{b}", f"s_mov_b32 s{d+1}, s{b+1}", f"s_mov_b32 s{d+2}, {nbytes:#x}", f"s_mov_b32 s{d+3}, 0x00020000")

def kernel_head(a, label):
    a(f".globl {label}", ".p2align 8", f".type {label},@function")
    a.label(label)

def descriptor(label, nv, accum=None, ns=102):
    accum = accum or (nv + 3)//4*4
    return f""".p2align 6
.amdhsa_kernel {label}
  .amdhsa_next_free_vgpr {nv}
  .amdhsa_next_free_sgpr {ns}
  .amdhsa_accum_offset {accum}
  .amdhsa_group_segment_fixed_size 0
  .amdhsa_kernarg_size 88
  .amdhsa_user_sgpr_count 2
  .amdhsa_user_sgpr_kernarg_segment_ptr 1
  .amdhsa_system_sgpr_workgroup_id_x 1
.end_amdhsa_kernel
"""
if __name__ == "__main__":
    for n in "WS_Q WS_KV WS_O WS_H WS_ST WS_WO WS_PART WS_MISC WS_END".split(): print(n, hex(globals()[n]))
    assert all((q*205)>>10 == q//5 for q in range(160))
    assert all((c*3277)>>16 == c//20 for c in range(640))
    assert all((t*205)>>14 == t//80 for t in range(512)), [t for t in range(512) if (t*205)>>14 != t//80][:5]
    assert all((u*205)>>11 == u//10 for u in range(80))
    print("ok", QSCALE)

import os
PROF = os.environ.get("PROF", "")
def stamp(a, kern, idx):
    if kern in PROF.split(","): a(f"s_memtime s[{60+2*idx}:{61+2*idx}]")
def stamp_real(a, kern, idx):
    if kern in PROF.split(","): a(f"s_memrealtime s[{60+2*idx}:{61+2*idx}]")
def stamp_out(a, kern, n, wave_sgpr):
    if kern not in PROF.split(","): return
    a(f"s_load_dwordx2 s[84:85], s[0:1], {KA_WS}", "s_waitcnt lgkmcnt(0)",
      f"s_add_u32 s84, s84, {WS_END}", "s_addc_u32 s85, s85, 0", "s_mov_b32 s86, 0x40000", "s_mov_b32 s87, 0x00020000",
      "s_lshl_b32 s88, s2, 3", f"s_add_u32 s88, s88, s{wave_sgpr}", "s_lshl_b32 s88, s88, 6", "v_mov_b32 v1, s88")
    for i in range(n): a(f"v_mov_b32 v2, s{60+2*i}", f"buffer_store_dword v2, v1, s[84:87], 0 offen offset:{4*i}")

TL = os.environ.get("TL", "")
def tl_start(a, i):
    if TL: a("s_memrealtime s[92:93]")
def tl_end(a, i):
    if not TL: return
    a(f"s_load_dwordx2 s[84:85], s[0:1], {KA_DBG}", "s_memrealtime s[94:95]", "s_waitcnt lgkmcnt(0)",
      f"s_sub_u32 s84, s84, {512*i}", "s_subb_u32 s85, s85, 0", "s_mov_b32 s86, 256", "s_mov_b32 s87, 0x00020000",
      "s_not_b32 s92, s92", "s_mov_b64 exec, 1", "v_mov_b32 v1, 0", "v_mov_b32 v2, s92", "v_mov_b32 v3, s94",
      f"buffer_atomic_umax v2, v1, s[84:87], 0 offen offset:{8*i} sc1", f"buffer_atomic_umax v3, v1, s[84:87], 0 offen offset:{8*i+4} sc1")
```

```python
from asmlib import *
NAME = "sequential_preLN__mha_block__moe_arch_mod__prompt"
S, D, H, DH, F = 2048, 640, 32, 20, 1728
KA_X, KA_WQKV, KA_WO, KA_BX, KA_WR, KA_WG, KA_WU, KA_WD, KA_OUT, KA_DBG, KA_WS = [8*i for i in range(11)]
QPB = 2560
QHS = 32*QPB
KPB = 5248
KHS = 32*KPB
WS_Q  = 0
WS_KV = WS_Q + 32*QHS
WS_O  = WS_KV + 32*KHS + 8192
WS_H  = WS_O + S*D*2
WS_ST = WS_H + S*D*2
WS_WO = WS_ST + S*16
WS_PART = WS_WO + D*D*2
WS_MISC = WS_PART + 4*2*F*4
WS_ACT = WS_MISC + 256
WS_END = WS_MISC + 8192
TAG = 0x600DF00D
OOB = 0x80000000
ONES = 0x3F803F80
import math, struct
def f32(x): return struct.unpack("<I", struct.pack("<f", x))[0]
QSCALE = math.log2(math.e) / math.sqrt(DH)

def srd(a, d, b, nbytes):
    a(f"s_mov_b32 s{d}, s{b}", f"s_mov_b32 s{d+1}, s{b+1}", f"s_mov_b32 s{d+2}, {nbytes:#x}", f"s_mov_b32 s{d+3}, 0x00020000")

def kernel_head(a, label):
    a(f".globl {label}", ".p2align 8", f".type {label},@function")
    a.label(label)

def descriptor(label, nv, accum=None, ns=102):
    accum = accum or (nv + 3)//4*4
    return f""".p2align 6
.amdhsa_kernel {label}
  .amdhsa_next_free_vgpr {nv}
  .amdhsa_next_free_sgpr {ns}
  .amdhsa_accum_offset {accum}
  .amdhsa_group_segment_fixed_size 0
  .amdhsa_kernarg_size 88
  .amdhsa_user_sgpr_count 2
  .amdhsa_user_sgpr_kernarg_segment_ptr 1
  .amdhsa_system_sgpr_workgroup_id_x 1
.end_amdhsa_kernel
"""
if __name__ == "__main__":
    for n in "WS_Q WS_KV WS_O WS_H WS_ST WS_WO WS_PART WS_MISC WS_END".split(): print(n, hex(globals()[n]))
    assert all((q*205)>>10 == q//5 for q in range(160))
    assert all((c*3277)>>16 == c//20 for c in range(640))
    assert all((t*205)>>14 == t//80 for t in range(512)), [t for t in range(512) if (t*205)>>14 != t//80][:5]
    assert all((u*205)>>11 == u//10 for u in range(80))
    print("ok", QSCALE)

import os
PROF = os.environ.get("PROF", "")
def stamp(a, kern, idx):
    if kern in PROF.split(","): a(f"s_memtime s[{60+2*idx}:{61+2*idx}]")
def stamp_real(a, kern, idx):
    if kern in PROF.split(","): a(f"s_memrealtime s[{60+2*idx}:{61+2*idx}]")
def stamp_out(a, kern, n, wave_sgpr):
    if kern not in PROF.split(","): return
    a(f"s_load_dwordx2 s[84:85], s[0:1], {KA_WS}", "s_waitcnt lgkmcnt(0)",
      f"s_add_u32 s84, s84, {WS_END}", "s_addc_u32 s85, s85, 0", "s_mov_b32 s86, 0x40000", "s_mov_b32 s87, 0x00020000",
      "s_lshl_b32 s88, s2, 3", f"s_add_u32 s88, s88, s{wave_sgpr}", "s_lshl_b32 s88, s88, 6", "v_mov_b32 v1, s88")
    for i in range(n): a(f"v_mov_b32 v2, s{60+2*i}", f"buffer_store_dword v2, v1, s[84:87], 0 offen offset:{4*i}")

TL = os.environ.get("TL", "")
def tl_start(a, i):
    if TL: a("s_memrealtime s[92:93]")
def tl_end(a, i):
    if not TL: return
    a(f"s_load_dwordx2 s[84:85], s[0:1], {KA_WS}", "s_memrealtime s[94:95]", "s_waitcnt lgkmcnt(0)",
      f"s_add_u32 s84, s84, {WS_END + i*0x10000}", "s_addc_u32 s85, s85, 0", "s_mov_b32 s86, 0x10000", "s_mov_b32 s87, 0x00020000",
      "s_lshl_b32 s88, s2, 7", "s_mov_b64 exec, 1", "v_lshrrev_b32 v1, 6, v0", "v_lshlrev_b32 v1, 4, v1", "v_add_u32 v1, s88, v1",
      "v_mov_b32 v4, s92", "v_mov_b32 v5, s94", "v_xor_b32 v6, 0x5ca1ab1e, v4", "v_xor_b32 v7, 0x0ddba11, v5",
      "buffer_store_dwordx4 v[4:7], v1, s[84:87], 0 offen")
```
